```python
import torch

def _softmax(x, axis=-1):
    return torch.softmax(x, dim=axis)
def _gelu(x):
    return torch.nn.functional.gelu(x, approximate="tanh")
def _silu(x):
    return torch.nn.functional.silu(x)
def _sigmoid(x):
    return torch.sigmoid(x)
def _layernorm(x, axis=-1, eps=1e-5):
    m = x.mean(dim=axis, keepdim=True)
    v = x.var(dim=axis, keepdim=True, unbiased=False)
    return (x - m) / torch.sqrt(v + eps)
def _scatter_add(tgt, idx, src, axis=0):
    return tgt.clone().index_add_(axis, idx, src)
def _segment_sum(src, seg, n):
    out = torch.zeros((n,) + src.shape[1:], dtype=src.dtype)
    return out.index_add_(0, seg, src)
def _pad(x, pw):
    flat = tuple(v for pair in reversed(pw) for v in pair)
    return torch.nn.functional.pad(x, flat)

kernel_name = 'interleave_layers__mha_block_cached__dense_activation_silu__decode'

def setup_inputs():

    _w = (lambda a: (lambda t: t.to(torch.bfloat16) if t.is_floating_point() else t)(torch.as_tensor(a)))
    def _A_setup():
        B, Sq, D = 8, 1, 512
        H, Sk, Dh = 32, 4096, 128
        return {
            "x": _w((lambda *s: torch.randn(*s, dtype=torch.bfloat16) * 0.1)(B, Sq, D)),
            "k_cache": _w((lambda *s: torch.randn(*s, dtype=torch.bfloat16) * 0.8)(B, H, Sk, Dh)),
            "v_cache": _w((lambda *s: torch.randn(*s, dtype=torch.bfloat16) * 3.2)(B, H, Sk, Dh)),
            "wq": _w((lambda *s: torch.randn(*s, dtype=torch.bfloat16) * 0.8)(D, H * Dh) * (D ** -0.5)),
            "wo": _w((lambda *s: torch.randn(*s, dtype=torch.bfloat16) * 3.2)(H * Dh, D) * ((H * Dh) ** -0.5)),
        }
    _A_in = _A_setup()

    def _B_setup():
        B, S, D, F = 8, 1, 512, 1792
        return {
            "x": _w((lambda *s: torch.randn(*s, dtype=torch.bfloat16) * 0.1)(B, S, D)),
            "w1": _w((lambda *s: torch.randn(*s, dtype=torch.bfloat16) * 1.6)(D, F) * (D ** -0.5)),
            "w2": _w((lambda *s: torch.randn(*s, dtype=torch.bfloat16) * 0.4)(F, D) * (F ** -0.5)),
        }
    _B_in = _B_setup()

    return {
        "A_x": _A_in["x"],
        "A_k_cache": _A_in["k_cache"],
        "A_v_cache": _A_in["v_cache"],
        "A_wq": _A_in["wq"],
        "A_wo": _A_in["wo"],
        "B_x": _B_in["x"],
        "B_w1": _B_in["w1"],
        "B_w2": _B_in["w2"],
    }

def reference(A_x, A_k_cache, A_v_cache, A_wq, A_wo, B_x, B_w1, B_w2):
    def _A_ref(x, k_cache, v_cache, wq, wo):
        B, Sq, D = x.shape
        H, Dh = 32, 128
        q = (lambda x, *d: x.permute(*d))((x @ wq).reshape(B, Sq, H, Dh), 0, 2, 1, 3)
        scores = torch.einsum("bhqd,bhkd->bhqk", q, k_cache) * (Dh ** -0.5)
        p = _softmax(scores, axis=-1)
        o = torch.einsum("bhqk,bhkd->bhqd", p, v_cache)
        return (lambda x, *d: x.permute(*d))(o, 0, 2, 1, 3).reshape(B, Sq, H * Dh) @ wo

    def _B_ref(x, w1, w2):
        h = torch.einsum("bsd,df->bsf", x, w1)
        h = _silu(h)
        out = torch.einsum("bsf,fd->bsd", h, w2)
        return out

    x = A_x
    x = x + _A_ref(_layernorm(x, axis=-1), A_k_cache, A_v_cache, A_wq, A_wo)
    x = x + _B_ref(_layernorm(x, axis=-1), B_w1, B_w2)
    x = x + _A_ref(_layernorm(x, axis=-1), A_k_cache, A_v_cache, A_wq, A_wo)
    x = x + _B_ref(_layernorm(x, axis=-1), B_w1, B_w2)
    return x
```

```python
import sys
PROF = '--prof' in sys.argv
OUT = [a for a in sys.argv[1:] if not a.startswith('--')][0]
NAME = 'interleave_layers__mha_block_cached__dense_activation_silu__decode_kernel'
L = []
def e(s): L.append('    ' + s)
def lab(s): L.append(s + ':')
_n = [0]
def newlab(p):
    _n[0] += 1; return f'{p}_{_n[0]}'

vLane=0; vOffKV=1; vOffWq=2; vOffWo=3; vOffW1=4; vOffW2=5; vRedW=6; vA=7
Q=8; ACC=12; S=20; T=36; cH=52; vLdsR=53; cH2=54; vB=55; XR=56; vC=60; vD=61; vE=62; vF=63
RING=64; VR=128
sB=3; sH=4; sW=5; sT=6; sT2=7
sK=8; sV=12; sWq=16; sWo=20; sW1=24; sW2=28; sWs=32; sX=36; sOut=40; sDbg=44
sMaskW=70
sM2=72; sM1=74
sGrp=76; sCnt=77; sTo=78; sLdsW=79; sC1=80; sEx=82; sStamp=84
RED=[0,8192]; LNC=16384; STAT=18432; LDS_RET=19456; LDS_TOTAL=LDS_RET+131072
PART=0; XS=2*1024*1024; PROFOFF=16*1024*1024
SENT='-1'
red_i=[0]
def nextred():
    r=RED[red_i[0]]; red_i[0]^=1; return r
def vr(b,n=4): return f'v[{b}:{b+n-1}]'
def ar(b,n=4): return f'a[{b}:{b+n-1}]'
def sr(b,n=4): return f's[{b}:{b+n-1}]'

vm=[]
def issue(tag):
    vm.append(tag); assert len(vm)<=63, len(vm)
def wait(tag):
    if tag not in vm: return
    i=max(k for k,t in enumerate(vm) if t==tag)
    n=len(vm)-1-i
    e(f's_waitcnt vmcnt({n})')
    del vm[:i+1]
def waitall():
    e('s_waitcnt vmcnt(0)'); del vm[:]

nst=[0]
def stamp(name):
    if not PROF: return
    i=nst[0]; nst[0]+=1
    assert i<16
    e(f's_memrealtime s[{sEx}:{sEx+1}]'); e('s_waitcnt lgkmcnt(0)'); e(f's_mov_b32 s{sStamp+i}, s{sEx}')
    print(f'stamp {i}: {name}', file=sys.stderr)

cur_soff=[None]
def soff(val):
    if val==0: return '0'
    if cur_soff[0]!=val:
        e(f's_mov_b32 s{sT}, {val}'); cur_soff[0]=val
    return f's{sT}'
def ld(dst, voff, srd, off, tag, nt=False, lds=False, stride4=True):
    if stride4: so,im = off - off%4096, off%4096
    else: so,im = off,0
    s=soff(so)
    fl=(f' offset:{im}' if im else '')+(' nt' if nt else '')
    if lds: e(f'buffer_load_dwordx4 v{voff}, {sr(srd)}, {s} offen{fl} lds')
    else: e(f'buffer_load_dwordx4 {dst}, v{voff}, {sr(srd)}, {s} offen{fl}')
    issue(tag)
def ring(i): return RING+4*i
def vdest(a,i):
    if a<8: return ('ring',ring(i))
    if a<10: return ('lds',(a-8)*16384+i*1024)
    if a<14: return ('a',((a-10)*16+i)*4)
    return ('v',VR+((a-14)*16+i)*4)
def ldV(a,i):
    k,r=vdest(a,i); off=a*16384+i*1024; tag=f'V{a}_{i}'
    if k=='lds':
        if i%4==0:
            e(f's_add_u32 m0, s{sLdsW}, {r}')
        ld(None,vOffKV,sV,off,tag,nt=True,lds=True)
    elif k=='a': ld(ar(r),vOffKV,sV,off,tag,nt=True)
    else: ld(vr(r),vOffKV,sV,off,tag,nt=True)
def ldK(a,i): ld(vr(ring(i)),vOffKV,sK,a*16384+i*1024,f'K{a}_{i}',nt=True)
def ldWq(i,dst): ld(vr(dst),vOffWq,sWq,i*32768,f'wq{i}',stride4=False)
def ldWo(i): ld(vr(ring(i%16)),vOffWo,sWo,i*1024,f'wo{i}')
def ldW1(i): ld(vr(ring(i)),vOffW1,sW1,i*3584,f'w1{i}',stride4=False)
def ldW2(i): ld(vr(ring(i)),vOffW2,sW2,i*1024,f'w2{i}')

DPP='row_mask:0xf bank_mask:0xf'
def axpy_dpp(w,cl,ch,bc):
    for j in range(4):
        e(f'v_dot2c_f32_bf16_dpp v{ACC+2*j}, v{cl}, v{w+j} row_newbcast:{bc} {DPP}')
        e(f'v_dot2c_f32_bf16_dpp v{ACC+2*j+1}, v{ch}, v{w+j} row_newbcast:{bc} {DPP}')
def axpy(w,cl,ch):
    for j in range(4):
        e(f'v_dot2c_f32_bf16 v{ACC+2*j}, v{cl}, v{w+j}')
        e(f'v_dot2c_f32_bf16 v{ACC+2*j+1}, v{ch}, v{w+j}')
def zero_acc():
    for j in range(8): e(f'v_mov_b32 v{ACC+j}, 0')
def xrow(regs,op,tmp):
    for sw in ('v_permlane16_swap_b32','v_permlane32_swap_b32'):
        for r,t in zip(regs,tmp): e(f'v_mov_b32 v{t}, v{r}')
        e('s_nop 1')
        for r,t in zip(regs,tmp): e(f'{sw} v{t}, v{r}')
        e('s_nop 1')
        for r,t in zip(regs,tmp): e(f'{op} v{r}, v{r}, v{t}')
def rowred(r,op):
    for k in (8,4,2,1):
        e('s_nop 1'); e(f'{op}_dpp v{r}, v{r}, v{r} row_ror:{k} {DPP}')
def wavered(r,op,tmp):
    rowred(r,op); xrow([r],op,[tmp])
def barrier():
    e('s_waitcnt lgkmcnt(0)'); e('s_barrier')
def red_write(base):
    e('s_nop 2')
    e(f'ds_write_b128 v{vRedW}, {vr(ACC)} offset:{base}')
    e(f'ds_write_b128 v{vRedW}, {vr(ACC+4)} offset:{base+16}')

def layernorm_to_lds(X):
    t=vC
    e(f'v_add_f32 v{t}, v{X}, v{X+1}')
    for j in range(2,8): e(f'v_add_f32 v{t}, v{t}, v{X+j}')
    wavered(t,'v_add_f32',vD)
    e(f'v_mul_f32 v{t}, 0x3b000000, v{t}')
    for j in range(8): e(f'v_sub_f32 v{X+j}, v{X+j}, v{t}')
    e(f'v_mul_f32 v{t}, v{X}, v{X}')
    for j in range(1,8): e(f'v_fma_f32 v{t}, v{X+j}, v{X+j}, v{t}')
    wavered(t,'v_add_f32',vD)
    e(f'v_mov_b32 v{vD}, 0x3727c5ac')
    e(f'v_fmac_f32 v{vD}, 0x3b000000, v{t}')
    e(f'v_rsq_f32 v{t}, v{vD}')
    e('s_nop 0')
    for j in range(8): e(f'v_mul_f32 v{X+j}, v{X+j}, v{t}')
    for j in range(8): e(f'v_cvt_pk_bf16_f32 v{X+j}, v{X+j}, 0')
    e(f'v_lshlrev_b32 v{vA}, 5, v{vLane}')
    e(f's_mov_b64 exec, s[{sMaskW}:{sMaskW+1}]')
    e(f'ds_write_b128 v{vA}, {vr(X)} offset:{LNC}')
    e(f'ds_write_b128 v{vA}, {vr(X+4)} offset:{LNC+16}')
    e('s_mov_b64 exec, -1')
    e('s_waitcnt lgkmcnt(0)')

def qproj(slotreg, after):
    e(f'v_and_b32 v{vA}, 15, v{vLane}'); e(f'v_lshlrev_b32 v{vA}, 4, v{vA}')
    e(f'v_lshrrev_b32 v{vB}, 4, v{vLane}'); e(f'v_lshl_add_u32 v{vA}, v{vB}, 2, v{vA}')
    e(f's_lshl_b32 s{sT2}, s{sW}, 9'); e(f'v_add_u32 v{vA}, s{sT2}, v{vA}')
    e(f'ds_read_b32 v{vC}, v{vA} offset:{LNC}'); e(f'ds_read_b32 v{vD}, v{vA} offset:{LNC+256}')
    zero_acc()
    e('s_waitcnt lgkmcnt(0)')
    e(f'v_lshlrev_b32 v{vE}, 16, v{vC}'); e(f'v_lshlrev_b32 v{vF}, 16, v{vD}'); e('s_nop 1')
    for i in range(32):
        wait(f'wq{i}')
        axpy_dpp(slotreg(i), vC if i<16 else vD, vE if i<16 else vF, i%16)
        after(i)
    rb=nextred(); red_write(rb); barrier()
    e(f'v_lshrrev_b32 v{vA}, 4, v{vLane}'); e(f'v_lshlrev_b32 v{vA}, 11, v{vA}')
    e(f'v_and_b32 v{vB}, 15, v{vLane}'); e(f'v_lshl_add_u32 v{vA}, v{vB}, 5, v{vA}')
    for half in range(2):
        for g in range(4): e(f'ds_read_b128 {vr(T+4*g)}, v{vA} offset:{rb+g*512+half*16}')
        e('s_waitcnt lgkmcnt(0)')
        for j in range(4):
            e(f'v_add_f32 v{T+j}, v{T+j}, v{T+4+j}'); e(f'v_add_f32 v{T+8+j}, v{T+8+j}, v{T+12+j}')
        for j in range(4): e(f'v_add_f32 v{ACC+4*half+j}, v{T+j}, v{T+8+j}')
    xrow([ACC+j for j in range(8)],'v_add_f32',[T+j for j in range(8)])
    for j in range(4): e(f'v_cvt_pk_bf16_f32 v{Q+j}, v{ACC+2*j}, v{ACC+2*j+1}')

def kgroup(nxt):
    for i in range(16):
        nxt('wait',i)
        w=ring(i)
        e(f'v_dot2_f32_bf16 v{T+i}, v{w}, v{Q}, 0')
        for j in range(1,4): e(f'v_dot2_f32_bf16 v{T+i}, v{w+j}, v{Q+j}, v{T+i}')
        nxt('issue',i)
    e('s_nop 2')
    for i in range(8): e(f'v_add_f32_dpp v{T+i}, v{T+i}, v{T+i} row_ror:8 row_mask:0xf bank_mask:0x3')
    for i in range(8): e(f'v_add_f32_dpp v{T+i}, v{T+i+8}, v{T+i+8} row_ror:8 row_mask:0xf bank_mask:0xc')
    for i in range(4): e(f'v_add_f32_dpp v{T+i}, v{T+i}, v{T+i} row_half_mirror row_mask:0xf bank_mask:0x5')
    for i in range(4): e(f'v_add_f32_dpp v{T+i}, v{T+i+4}, v{T+i+4} row_half_mirror row_mask:0xf bank_mask:0xa')
    e('s_nop 1')
    for i in range(4): e(f'v_add_f32_dpp v{T+i}, v{T+i}, v{T+i} quad_perm:[2,3,0,1] {DPP}')
    for i in range(2): e(f'v_cndmask_b32 v{T+i}, v{T+i}, v{T+i+2}, s[{sM2}:{sM2+1}]')
    e('s_nop 1')
    for i in range(2): e(f'v_add_f32_dpp v{T+i}, v{T+i}, v{T+i} quad_perm:[1,0,3,2] {DPP}')
    for j in range(15): e(f'v_mov_b32 v{S+j}, v{S+j+1}')
    e(f'v_cndmask_b32 v{S+15}, v{T}, v{T+1}, s[{sM1}:{sM1+1}]')

def kphase():
    assert vm[-16:]==[f'K0_{i}' for i in range(16)], vm
    e(f's_mov_b32 s{sGrp}, 16384'); e(f's_mov_b32 s{sCnt}, 15')
    lp=newlab('KLOOP'); lab(lp)
    def nx(k,i):
        if k=='wait': e('s_waitcnt vmcnt(15)')
        else:
            if i%4==0:
                if i==0: e(f's_mov_b32 s{sT}, s{sGrp}')
                else: e(f's_add_u32 s{sT}, s{sGrp}, {i*1024}')
            im=(i%4)*1024
            e(f'buffer_load_dwordx4 {vr(ring(i))}, v{vOffKV}, {sr(sK)}, s{sT} offen'+(f' offset:{im}' if im else '')+' nt')
    kgroup(nx)
    e(f's_add_u32 s{sGrp}, s{sGrp}, 16384'); e(f's_sub_u32 s{sCnt}, s{sCnt}, 1')
    e(f's_cmp_lg_u32 s{sCnt}, 0'); e(f's_cbranch_scc1 {lp}')
    cur_soff[0]=None
    del vm[:]
    for i in range(16): issue(f'K15_{i}')
    def nx2(k,i):
        if k=='wait': wait(f'K15_{i}')
        else: ldV(0,i)
    kgroup(nx2)

def softmax():
    c='0x3e0293ee'
    e(f's_mov_b32 s{sC1}, {c}')
    m=vC
    e(f'v_max3_f32 v{m}, v{S}, v{S+1}, v{S+2}')
    for j in range(3,15,2): e(f'v_max3_f32 v{m}, v{m}, v{S+j}, v{S+j+1}')
    e(f'v_max_f32 v{m}, v{m}, v{S+15}')
    wavered(m,'v_max_f32',vD)
    e(f'v_mul_f32 v{m}, s{sC1}, v{m}')
    for j in range(16): e(f'v_fma_f32 v{S+j}, v{S+j}, s{sC1}, -v{m}')
    for j in range(16): e(f'v_exp_f32 v{S+j}, v{S+j}')
    e('s_nop 0')
    for j in range(16): e(f'v_cvt_pk_bf16_f32 v{S+j}, v{S+j}, 0')
    l=vD
    e(f'v_mov_b32 v{l}, 0')
    for j in range(16):
        e(f'v_lshlrev_b32 v{vE}, 16, v{S+j}'); e(f'v_add_f32 v{l}, v{l}, v{vE}')
    wavered(l,'v_add_f32',vE)
    zero_acc()

def vslot(a,i,kind,r,tb):
    if kind=='a':
        for j in range(4): e(f'v_accvgpr_read_b32 v{tb+j}, a{r+j}')
        w=tb
    elif kind=='lds': w=tb
    else: w=r
    axpy_dpp(w,S+a,cH if a%2==0 else cH2,i)

def lds_group(a,first_pass,inter):
    def rd(i):
        if first_pass: wait(f'V{a}_{i}')
        e(f'ds_read_b128 {vr(T+4*(i%4))}, v{vLdsR} offset:{vdest(a,i)[1]}')
    for i in range(3): rd(i)
    for i in range(16):
        if i+3<16: rd(i+3)
        n=min(3,15-i)
        e(f's_waitcnt lgkmcnt({n})')
        vslot(a,i,'lds',None,T+4*(i%4))
        inter(i)

def set_ch(a):
    e(f'v_lshlrev_b32 v{cH if a%2==0 else cH2}, 16, v{S+a}')

def vphase(p):
    if p==0:
        for a in range(16):
            set_ch(a); e('s_nop 1')
            def nxt(i):
                if a<15: ldV(a+1,i)
                else: ldWo(i)
            if vdest(a,0)[0]=='lds': lds_group(a,True,nxt)
            else:
                for i in range(16):
                    wait(f'V{a}_{i}')
                    k,r=vdest(a,i); vslot(a,i,k,r,T+4*(i%4)); nxt(i)
    else:
        for a in range(8):
            ra=8+a
            e(f'v_lshlrev_b32 v{cH}, 16, v{S+a}'); e(f'v_lshlrev_b32 v{cH2}, 16, v{S+ra}'); e('s_nop 1')
            def streamed(i):
                wait(f'V{a}_{i}')
                axpy_dpp(ring(i),S+a,cH,i)
                if a<7: ldV(a+1,i)
                else: ldWo(i)
            k0=vdest(ra,0)[0]
            if k0=='lds':
                def rd(i): e(f'ds_read_b128 {vr(T+4*(i%4))}, v{vLdsR} offset:{vdest(ra,i)[1]}')
                for i in range(3): rd(i)
                for i in range(16):
                    if i+3<16: rd(i+3)
                    e(f's_waitcnt lgkmcnt({min(3,15-i)})')
                    axpy_dpp(T+4*(i%4),S+ra,cH2,i)
                    streamed(i)
            else:
                for i in range(16):
                    k,r=vdest(ra,i)
                    if k=='a':
                        for j in range(4): e(f'v_accvgpr_read_b32 v{T+4*(i%4)+j}, a{r+j}')
                        axpy_dpp(T+4*(i%4),S+ra,cH2,i)
                    else: axpy_dpp(r,S+ra,cH2,i)
                    streamed(i)

def oreduce_outproj():
    rb=nextred(); red_write(rb)
    e(f's_lshl_b32 s{sT2}, s{sW}, 3'); e(f'v_mov_b32 v{vA}, s{sT2}')
    e('s_mov_b64 exec, 1'); e(f'ds_write_b64 v{vA}, v[{vC}:{vD}] offset:{STAT}'); e('s_mov_b64 exec, -1')
    barrier()
    e(f'v_lshrrev_b32 v{vB}, 4, v{vLane}')
    e(f'v_lshlrev_b32 v{vA}, 3, v{vB}'); e(f'ds_read_b64 v[{vC}:{vD}], v{vA} offset:{STAT}')
    e(f'v_lshlrev_b32 v{vA}, 11, v{vB}')
    e(f'v_and_b32 v{vB}, 15, v{vLane}'); e(f'v_lshl_add_u32 v{vA}, v{vB}, 2, v{vA}')
    e(f's_lshl_b32 s{sT2}, s{sW}, 7'); e(f'v_add_u32 v{vA}, s{sT2}, v{vA}')
    for a in range(2):
        for g in range(4): e(f'ds_read_b32 v{T+4*a+g}, v{vA} offset:{rb+g*512+a*64}')
    e('s_waitcnt lgkmcnt(0)')
    e(f'v_mov_b32 v{vE}, v{vC}')
    xrow([vE],'v_max_f32',[vF])
    e(f'v_sub_f32 v{vC}, v{vC}, v{vE}'); e(f'v_exp_f32 v{vC}, v{vC}'); e('s_nop 0')
    e(f'v_mul_f32 v{vD}, v{vD}, v{vC}')
    for a in range(2):
        b=T+4*a
        e(f'v_add_f32 v{b}, v{b}, v{b+1}'); e(f'v_add_f32 v{b+2}, v{b+2}, v{b+3}'); e(f'v_add_f32 v{b}, v{b}, v{b+2}')
        e(f'v_mul_f32 v{b}, v{b}, v{vC}')
    xrow([vD,T,T+4],'v_add_f32',[vF,T+8,T+9])
    e(f'v_rcp_f32 v{vD}, v{vD}'); e('s_nop 0')
    e(f'v_mul_f32 v{T}, v{T}, v{vD}'); e(f'v_mul_f32 v{T+4}, v{T+4}, v{vD}')
    e(f'v_cvt_pk_bf16_f32 v{vC}, v{T}, 0'); e(f'v_cvt_pk_bf16_f32 v{vD}, v{T+4}, 0')
    e(f'v_lshlrev_b32 v{vE}, 16, v{vC}'); e(f'v_lshlrev_b32 v{vF}, 16, v{vD}')
    zero_acc();
    for i in range(32):
        wait(f'wo{i}')
        axpy_dpp(ring(i%16), vC if i<16 else vD, vE if i<16 else vF, i%16)
        if i<16: ldWo(i+16)
        else: ldW1(i-16)

def spin_guard(lp):
    e(f's_sub_u32 s{sTo}, s{sTo}, 1'); e(f's_cmp_eq_u32 s{sTo}, 0'); e(f's_cbranch_scc0 {lp}')

def publish(stage,first=False):
    rb=nextred(); red_write(rb); barrier()
    sk=newlab('NOPUB')
    e(f's_cmp_ge_u32 s{sW}, 2'); e(f's_cbranch_scc1 {sk}')
    saved=list(vm)
    e(f's_lshl_b32 s{sT2}, s{sW}, 10'); e(f'v_lshl_add_u32 v{vA}, v{vLane}, 4, s{sT2}')
    for w in range(4): e(f'ds_read_b128 {vr(T+4*w)}, v{vA} offset:{rb+w*2048}')
    e(f'v_lshrrev_b32 v{vB}, 6, v{vA}'); e(f'v_lshlrev_b32 v{vB}, 11, v{vB}')
    e(f'v_and_b32 v{vA}, 48, v{vA}'); e(f'v_add_u32 v{vB}, v{vB}, v{vA}')
    e(f's_lshl_b32 s{sT2}, s{sB}, 16'); e(f's_lshl_b32 s{sT}, s{sH}, 6'); e(f's_add_u32 s{sT2}, s{sT2}, s{sT}')
    e(f's_add_u32 s{sT2}, s{sT2}, {PART+stage*524288}'); cur_soff[0]=None
    if first:
        lp=newlab('START'); ok=newlab('STARTOK')
        e(f's_lshl_b32 s{sT}, s{sB}, 5'); e(f'v_mov_b32 v{vE}, s{sT}'); e(f's_mov_b32 s{sTo}, 0x20000')
        lab(lp)
        e(f'buffer_load_dword v{vF}, v{vE}, {sr(sDbg)}, 0 offen sc0 sc1'); e('s_waitcnt vmcnt(0)')
        e(f'v_cmp_le_u32 vcc, 32, v{vF}'); e(f's_cbranch_vccnz {ok}')
        spin_guard(lp); lab(ok)
    e('s_waitcnt lgkmcnt(0)')
    for j in range(4):
        e(f'v_add_f32 v{T+j}, v{T+j}, v{T+4+j}'); e(f'v_add_f32 v{T+8+j}, v{T+8+j}, v{T+12+j}')
    for j in range(4): e(f'v_add_f32 v{T+j}, v{T+j}, v{T+8+j}')
    e(f'buffer_store_dwordx4 {vr(T)}, v{vB}, {sr(sWs)}, s{sT2} offen sc0 sc1')
    lab(sk)
    vm[:]=saved

def poll(loads, regs, lp, ok):
    e(f's_mov_b32 s{sTo}, 0x20000')
    lab(lp)
    loads()
    e('s_waitcnt vmcnt(0)')
    m=vF
    e(f'v_max3_u32 v{m}, v{regs[0]}, v{regs[1]}, v{regs[2]}')
    e(f'v_max3_u32 v{m}, v{m}, v{regs[3]}, v{regs[4]}'); e(f'v_max3_u32 v{m}, v{m}, v{regs[5]}, v{regs[6]}')
    e(f'v_max_u32 v{m}, v{m}, v{regs[7]}')
    e(f'v_cmp_eq_u32 vcc, {SENT}, v{m}')
    e(f's_cbranch_vccz {ok}')
    spin_guard(lp); lab(ok)
    del vm[:]

def hopA(stage,final):
    sk=newlab('NOHOPA')
    e(f's_cmp_lg_u32 s{sW}, 0'); e(f's_cbranch_scc1 {sk}')
    saved=list(vm)
    e(f's_lshl_b32 s{sT2}, s{sB}, 16'); e(f's_lshl_b32 s{sT}, s{sH}, 11'); e(f's_add_u32 s{sT2}, s{sT2}, s{sT}')
    e(f's_add_u32 s{sT2}, s{sT2}, {PART+stage*524288}'); cur_soff[0]=None
    e(f'v_lshlrev_b32 v{vA}, 4, v{vLane}')
    def loads():
        e(f'buffer_load_dwordx4 {vr(T)}, v{vA}, {sr(sWs)}, s{sT2} offen sc0 sc1')
        e(f'buffer_load_dwordx4 {vr(T+4)}, v{vA}, {sr(sWs)}, s{sT2} offen offset:1024 sc0 sc1')
    poll(loads,[T+j for j in range(8)],newlab('HA'),newlab('HAOK'))
    for j in range(4): e(f'v_add_f32 v{T+j}, v{T+j}, v{T+4+j}')
    for k in (4,8):
        e('s_nop 1')
        for j in range(4): e(f'v_add_f32_dpp v{T+j}, v{T+j}, v{T+j} row_ror:{k} {DPP}')
    xrow([T+j for j in range(4)],'v_add_f32',[T+4+j for j in range(4)])
    e(f'v_cvt_pk_bf16_f32 v{T+4}, v{T}, v{T+1}'); e(f'v_cvt_pk_bf16_f32 v{T+5}, v{T+2}, v{T+3}')
    e(f'v_lshlrev_b32 v{T}, 16, v{T+4}'); e(f'v_and_b32 v{T+1}, 0xffff0000, v{T+4}')
    e(f'v_lshlrev_b32 v{T+2}, 16, v{T+5}'); e(f'v_and_b32 v{T+3}, 0xffff0000, v{T+5}')
    for j in range(4): e(f'v_add_f32 v{T+j}, v{T+j}, v{XR+j}')
    e(f'v_cvt_pk_bf16_f32 v{T+4}, v{T}, v{T+1}'); e(f'v_cvt_pk_bf16_f32 v{T+5}, v{T+2}, v{T+3}')
    if final:
        e(f'v_lshlrev_b32 v{vA}, 3, v{vLane}')
        e('s_mov_b64 exec, 15')
        e(f'buffer_store_dwordx2 v[{T+4}:{T+5}], v{vA}, {sr(sOut)}, 0 offen')
        e('s_mov_b64 exec, -1')
    else:
        e(f'v_lshlrev_b32 v{XR}, 16, v{T+4}'); e(f'v_and_b32 v{XR+1}, 0xffff0000, v{T+4}')
        e(f'v_lshlrev_b32 v{XR+2}, 16, v{T+5}'); e(f'v_and_b32 v{XR+3}, 0xffff0000, v{T+5}')
        e(f's_lshl_b32 s{sT2}, s{sB}, 11'); e(f's_lshl_b32 s{sT}, s{sH}, 6'); e(f's_add_u32 s{sT2}, s{sT2}, s{sT}')
        e(f's_add_u32 s{sT2}, s{sT2}, {XS+stage*16384}')
        e('s_mov_b64 exec, 15')
        e(f'buffer_store_dwordx4 {vr(XR)}, v{vA}, {sr(sWs)}, s{sT2} offen sc0 sc1')
        e('s_mov_b64 exec, -1')
    lab(sk)
    vm[:]=saved

def hopB(stage):
    e(f's_lshl_b32 s{sT2}, s{sB}, 11'); e(f's_add_u32 s{sT2}, s{sT2}, {XS+stage*16384}'); cur_soff[0]=None
    e(f'v_lshlrev_b32 v{vA}, 5, v{vLane}')
    def loads():
        e(f'buffer_load_dwordx4 {vr(T)}, v{vA}, {sr(sWs)}, s{sT2} offen sc0 sc1')
        e(f'buffer_load_dwordx4 {vr(T+4)}, v{vA}, {sr(sWs)}, s{sT2} offen offset:16 sc0 sc1')
    poll(loads,[T+j for j in range(8)],newlab('HB'),newlab('HBOK'))

def ffn(after_w2):
    e(f'v_lshrrev_b32 v{vA}, 3, v{vLane}'); e(f'v_lshlrev_b32 v{vA}, 6, v{vA}')
    e(f's_lshl_b32 s{sT2}, s{sW}, 9'); e(f'v_add_u32 v{vA}, s{sT2}, v{vA}')
    for k in range(4): e(f'ds_read_b128 {vr(S+4*k)}, v{vA} offset:{LNC+16*k}')
    zero_acc()
    e('s_waitcnt lgkmcnt(0)')
    for i in range(16):
        e(f'v_lshlrev_b32 v{cH if i%2==0 else cH2}, 16, v{S+i}')
        wait(f'w1{i}')
        axpy(ring(i),S+i,cH if i%2==0 else cH2)
        if i<14: ldW2(i)
    rb=nextred(); red_write2(rb); barrier()
    e(f'v_lshrrev_b32 v{vA}, 4, v{vLane}'); e(f'v_lshlrev_b32 v{vA}, 11, v{vA}')
    e(f'v_and_b32 v{vB}, 15, v{vLane}'); e(f'v_lshl_add_u32 v{vA}, v{vB}, 2, v{vA}')
    e(f's_mul_i32 s{sT2}, s{sW}, 56'); e(f'v_add_u32 v{vA}, s{sT2}, v{vA}')
    for p in range(8): e(f'ds_read_b32 v{T+p}, v{vA} offset:{rb+p*256}')
    e('s_waitcnt lgkmcnt(0)')
    for j in range(4): e(f'v_add_f32 v{T+j}, v{T+j}, v{T+4+j}')
    e(f'v_add_f32 v{T}, v{T}, v{T+1}'); e(f'v_add_f32 v{T+2}, v{T+2}, v{T+3}'); e(f'v_add_f32 v{T}, v{T}, v{T+2}')
    xrow([T],'v_add_f32',[T+1])
    e(f'v_cvt_pk_bf16_f32 v{T}, v{T}, 0'); e(f'v_lshlrev_b32 v{T}, 16, v{T}')
    e(f'v_mul_f32 v{T+1}, 0xbfb8aa3b, v{T}'); e(f'v_exp_f32 v{T+1}, v{T+1}'); e('s_nop 0')
    e(f'v_add_f32 v{T+1}, 1.0, v{T+1}'); e(f'v_rcp_f32 v{T+1}, v{T+1}'); e('s_nop 0')
    e(f'v_mul_f32 v{T}, v{T}, v{T+1}')
    e(f'v_cvt_pk_bf16_f32 v{vC}, v{T}, 0'); e(f'v_lshlrev_b32 v{vE}, 16, v{vC}')
    zero_acc()
    for i in range(14):
        wait(f'w2{i}')
        axpy_dpp(ring(i),vC,vE,i)
        after_w2(i)
    after_w2(14); after_w2(15)
def red_write2(base):
    red_write(base)

L.append(open('interleave_layers__mha_block_cached__dense_activation_silu__decode.s.ref').read().split('; Override launch')[0].rstrip())
L.append(f'; @launch grid=(256,1,1) block=(256,1,1) lds={LDS_TOTAL}')
L.append('.amdgcn_target "amdgcn-amd-amdhsa--gfx950"'); L.append('.text'); L.append(f'.globl {NAME}'); L.append('.p2align 8')
L.append(f'.type {NAME},@function'); lab(NAME)
e('s_cmp_ge_u32 s2, 256'); e('s_cbranch_scc1 L_END')
e('s_load_dwordx16 s[48:63], s[0:1], 0'); e('s_load_dwordx4 s[64:67], s[0:1], 64'); e('s_load_dwordx2 s[68:69], s[0:1], 80')
e(f's_and_b32 s{sT}, s2, 7'); e(f's_lshl_b32 s{sT}, s{sT}, 2'); e(f's_lshr_b32 s{sT2}, s2, 3')
e(f's_and_b32 s{sH}, s{sT2}, 3'); e(f's_add_u32 s{sH}, s{sH}, s{sT}'); e(f's_lshr_b32 s{sB}, s{sT2}, 2')
e(f'v_lshrrev_b32 v1, 6, v0'); e(f'v_and_b32 v{vLane}, 63, v0'); e(f'v_readfirstlane_b32 s{sW}, v1')
e('s_waitcnt lgkmcnt(0)')
def srd(d,plo,offs,num):
    if offs is None: e(f's_mov_b32 s{d}, s{plo}'); e(f's_and_b32 s{d+1}, s{plo+1}, 0xffff')
    else:
        e(f's_add_u32 s{d}, s{plo}, s{offs}'); e(f's_addc_u32 s{d+1}, s{plo+1}, 0'); e(f's_and_b32 s{d+1}, s{d+1}, 0xffff')
    e(f's_mov_b32 s{d+2}, {num}'); e(f's_mov_b32 s{d+3}, 0x00020000')
e(f's_lshl_b32 s{sT}, s{sB}, 5'); e(f's_add_u32 s{sT}, s{sT}, s{sH}'); e(f's_lshl_b32 s{sT}, s{sT}, 20')
srd(sK,50,sT,0x100000); srd(sV,52,sT,0x100000)
e(f's_lshl_b32 s{sT}, s{sH}, 8'); e(f's_sub_u32 s{sT2}, {512*8192}, s{sT}'); srd(sWq,54,sT,f's{sT2}')
e(f's_lshl_b32 s{sT}, s{sH}, 17'); srd(sWo,56,sT,131072)
e(f's_mul_i32 s{sT}, s{sH}, 112'); e(f's_sub_u32 s{sT2}, {512*3584}, s{sT}'); srd(sW1,60,sT,f's{sT2}')
e(f's_mul_i32 s{sT}, s{sH}, 57344'); srd(sW2,62,sT,57344)
srd(sWs,68,None,32*1024*1024)
e(f's_lshl_b32 s{sT}, s{sB}, 10'); srd(sX,48,sT,1024)
e(f's_lshl_b32 s{sT2}, s{sH}, 5'); e(f's_add_u32 s{sT}, s{sT}, s{sT2}'); srd(sOut,64,sT,32)
srd(sDbg,66,None,256)
stamp('start')
e(f's_lshl_b32 s{sT}, s{sW}, 4'); e(f's_mov_b64 s[{sMaskW}:{sMaskW+1}], 0xffff'); e(f's_lshl_b64 s[{sMaskW}:{sMaskW+1}], s[{sMaskW}:{sMaskW+1}], s{sT}')
e(f's_mov_b32 s{sM2}, 0xcccccccc'); e(f's_mov_b32 s{sM2+1}, 0xcccccccc'); e(f's_mov_b32 s{sM1}, 0xaaaaaaaa'); e(f's_mov_b32 s{sM1+1}, 0xaaaaaaaa')
e(f's_lshl_b32 s{sLdsW}, s{sW}, 15'); e(f's_add_u32 s{sLdsW}, s{sLdsW}, {LDS_RET}'); e(f'v_lshl_add_u32 v{vLdsR}, v{vLane}, 4, s{sLdsW}')
e(f's_lshl_b32 s{sT}, s{sW}, 18'); e(f'v_lshl_add_u32 v{vOffKV}, v{vLane}, 4, s{sT}')
e(f's_lshl_b32 s{sT}, s{sW}, 15'); e(f'v_lshl_add_u32 v{vOffWo}, v{vLane}, 4, s{sT}')
e(f's_mul_i32 s{sT}, s{sW}, 14336'); e(f'v_lshl_add_u32 v{vOffW2}, v{vLane}, 4, s{sT}')
e(f's_lshl_b32 s{sT}, s{sW}, 11'); e(f'v_lshl_add_u32 v{vRedW}, v{vLane}, 5, s{sT}')
e(f'v_lshrrev_b32 v{vA}, 4, v{vLane}'); e(f'v_lshlrev_b32 v{vA}, 13, v{vA}'); e(f'v_and_b32 v{vB}, 15, v{vLane}')
e(f'v_lshl_add_u32 v{vA}, v{vB}, 4, v{vA}'); e(f's_lshl_b32 s{sT}, s{sW}, 20'); e(f'v_add_u32 v{vOffWq}, s{sT}, v{vA}')
e(f'v_lshrrev_b32 v{vA}, 3, v{vLane}'); e(f'v_lshlrev_b32 v{vA}, 4, v{vA}'); e(f's_lshl_b32 s{sT}, s{sW}, 7'); e(f'v_add_u32 v{vA}, s{sT}, v{vA}')
e(f's_movk_i32 s{sT}, 3584'); e(f'v_mul_lo_u32 v{vA}, v{vA}, s{sT}'); e(f'v_and_b32 v{vB}, 7, v{vLane}'); e(f'v_lshl_add_u32 v{vOffW1}, v{vB}, 4, v{vA}')
e(f'v_lshlrev_b32 v{vA}, 4, v{vLane}')
e(f'buffer_load_dwordx4 {vr(S)}, v{vA}, {sr(sX)}, 0 offen'); issue('x')
e(f'v_lshlrev_b32 v{vB}, 3, v{vLane}'); e(f's_lshl_b32 s{sT}, s{sH}, 5')
e(f'buffer_load_dwordx2 v[{S+4}:{S+5}], v{vB}, {sr(sX)}, s{sT} offen'); issue('xr')
for j in range(4): e(f'v_mov_b32 v{T+j}, {SENT}')
e(f's_lshl_b32 s{sT}, s{sW}, 19'); e(f's_lshl_b32 s{sT2}, s{sB}, 16'); e(f's_add_u32 s{sT}, s{sT}, s{sT2}')
e(f's_lshl_b32 s{sT2}, s{sH}, 11'); e(f's_add_u32 s{sT}, s{sT}, s{sT2}')
e(f'buffer_store_dwordx4 {vr(T)}, v{vA}, {sr(sWs)}, s{sT} offen sc0 sc1'); issue('init')
e(f'buffer_store_dwordx4 {vr(T)}, v{vA}, {sr(sWs)}, s{sT} offen offset:1024 sc0 sc1'); issue('init')
e(f's_lshl_b32 s{sT}, s{sW}, 14'); e(f's_lshl_b32 s{sT2}, s{sB}, 11'); e(f's_add_u32 s{sT}, s{sT}, s{sT2}')
e(f's_lshl_b32 s{sT2}, s{sH}, 6'); e(f's_add_u32 s{sT}, s{sT}, s{sT2}'); e(f's_add_u32 s{sT}, s{sT}, {XS}')
e('s_mov_b64 exec, 15')
e(f'buffer_store_dwordx4 {vr(T)}, v{vA}, {sr(sWs)}, s{sT} offen sc0 sc1'); issue('init')
e('s_mov_b64 exec, -1')
cur_soff[0]=None
for i in range(32): ldWq(i,VR+4*i)
for i in range(16): ldK(0,i)
wait('xr')
for j in range(4):
    e(f'v_lshlrev_b32 v{T+2*j}, 16, v{S+j}'); e(f'v_and_b32 v{T+2*j+1}, 0xffff0000, v{S+j}')
e(f'v_lshlrev_b32 v{XR}, 16, v{S+4}'); e(f'v_and_b32 v{XR+1}, 0xffff0000, v{S+4}')
e(f'v_lshlrev_b32 v{XR+2}, 16, v{S+5}'); e(f'v_and_b32 v{XR+3}, 0xffff0000, v{S+5}')
layernorm_to_lds(T)
qproj(lambda i: VR+4*i, lambda i: None)
sk=newlab('NOSIG'); e(f's_cmp_lg_u32 s{sW}, 0'); e(f's_cbranch_scc1 {sk}')
e(f's_lshl_b32 s{sT2}, s{sB}, 5'); e(f'v_mov_b32 v{vA}, s{sT2}'); e(f'v_mov_b32 v{vB}, 1')
e('s_mov_b64 exec, 1'); e(f'buffer_atomic_add v{vB}, v{vA}, {sr(sDbg)}, 0 offen sc1'); e('s_mov_b64 exec, -1')
lab(sk)
ATOMIC_FIX=True
stamp('q1 done')
for layer in range(2):
    if layer==0:
        pass
    kphase(); stamp(f'K{layer} done')
    softmax()
    vphase(layer); stamp(f'V{layer} done')
    oreduce_outproj(); stamp(f'outproj{layer}')
    publish(2*layer, first=(layer==0))
    hopA(2*layer,False); hopB(2*layer); stamp(f'hop1_{layer}')
    layernorm_to_lds(T)
    if layer==0:
        ffn(lambda i: ldWq(i,ring(i)))
    else:
        ffn(lambda i: None)
    publish(2*layer+1); stamp(f'ffn{layer}')
    if layer==0:
        hopA(1,False); hopB(1); stamp('hop2_0')
        layernorm_to_lds(T)
        def after(i):
            if i<16: ldWq(i+16,ring(i))
            else: ldK(0,i-16)
        qproj(lambda i: ring(i%16), after); stamp('q2 done')
    else:
        hopA(3,True); stamp('final')
e('s_waitcnt vmcnt(0)')
if PROF:
    sk=newlab('NOPROF'); e(f's_cmp_lg_u32 s{sW}, 0'); e(f's_cbranch_scc1 {sk}')
    e(f's_lshl_b32 s{sT}, s2, 6'); e(f's_add_u32 s{sT}, s{sT}, {PROFOFF}'); e(f'v_mov_b32 v{vA}, 0')
    for i in range(16):
        e(f'v_mov_b32 v{T}, s{sStamp+i}'); e(f'buffer_store_dword v{T}, v{vA}, {sr(sWs)}, s{sT} offen offset:{4*i}'); e('s_waitcnt vmcnt(0)')
    lab(sk)
lab('L_END'); e('s_endpgm')
L.append(f'''.section .rodata,"a"
.p2align 6
.amdhsa_kernel {NAME}
  .amdhsa_next_free_vgpr 512
  .amdhsa_next_free_sgpr 102
  .amdhsa_accum_offset 256
  .amdhsa_group_segment_fixed_size 0
  .amdhsa_kernarg_size 88
  .amdhsa_user_sgpr_count 2
  .amdhsa_user_sgpr_kernarg_segment_ptr 1
  .amdhsa_system_sgpr_workgroup_id_x 1
.end_amdhsa_kernel''')
open(OUT,'w').write('\n'.join(L)+'\n')
```

```python
import sys
PROF = '--prof' in sys.argv
def opt(name,default):
    for a in sys.argv:
        if a.startswith('--'+name+'='): return int(a.split('=')[1])
    return default
D=opt('D',12)
R=16
NL=opt('NL',35)
NA=64; NV=32
WARM=opt('WARM',1)
NRET=NL+NA+NV; NS=256-NRET
OUT = [a for a in sys.argv[1:] if not a.startswith('--')][0]
NAME = 'interleave_layers__mha_block_cached__dense_activation_silu__decode_kernel'
L = []
def e(s): L.append('    ' + s)
def lab(s): L.append(s + ':')
_n = [0]
def newlab(p):
    _n[0] += 1; return f'{p}_{_n[0]}'

vLane=0; vOffKV=1; vOffWq=2; vOffWo=3; vOffW1=4; vOffW2=5; vRedW=6; vA=7
Q=8; ACC=12; S=20; T=36; cH=52; vLdsR=53; cH2=54; vB=55; XR=56; vC=60; vD=61; vE=62; vF=63
RING=64; VR=128; vStg=T+12
sB=3; sH=4; sW=5; sT=6; sT2=7
sK=8; sV=12; sWq=16; sWo=20; sW1=24; sW2=28; sWs=32; sX=36; sOut=40; sDbg=44
sMaskW=70
sM2=72; sM1=74
sWarm=48; sGrp=76; sCnt=77; sTo=78; sLdsW=79; sC1=80; sEx=82; sStamp=84
RED=[0,8192]; LNC=16384; STAT=18432; LDS_RET=19456; LDS_TOTAL=LDS_RET+4*NL*1024
PART=0; XS=2*1024*1024; PROFOFF=16*1024*1024
SENT='-1'
red_i=[0]
def nextred():
    r=RED[red_i[0]]; red_i[0]^=1; return r
def vr(b,n=4): return f'v[{b}:{b+n-1}]'
def ar(b,n=4): return f'a[{b}:{b+n-1}]'
def sr(b,n=4): return f's[{b}:{b+n-1}]'

vm=[]
def issue(tag):
    vm.append(tag); assert len(vm)<=63, len(vm)
def wait(tag):
    if tag not in vm: return
    i=max(k for k,t in enumerate(vm) if t==tag)
    n=len(vm)-1-i
    e(f's_waitcnt vmcnt({n})')
    del vm[:i+1]
def waitall():
    e('s_waitcnt vmcnt(0)'); del vm[:]

nst=[0]
def stamp(name):
    if not PROF: return
    i=nst[0]; nst[0]+=1
    assert i<16
    e(f's_memrealtime s[{sEx}:{sEx+1}]'); e('s_waitcnt lgkmcnt(0)'); e(f's_mov_b32 s{sStamp+i}, s{sEx}')
    print(f'stamp {i}: {name}', file=sys.stderr)

cur_soff=[None]
def soff(val):
    if val==0: return '0'
    if cur_soff[0]!=val:
        e(f's_mov_b32 s{sT}, {val}'); cur_soff[0]=val
    return f's{sT}'
def ld(dst, voff, srd, off, tag, nt=False, lds=False, stride4=True):
    if stride4: so,im = off - off%4096, off%4096
    else: so,im = off,0
    s=soff(so)
    fl=(f' offset:{im}' if im else '')+(' nt' if nt else '')
    if lds: e(f'buffer_load_dwordx4 v{voff}, {sr(srd)}, {s} offen{fl} lds')
    else: e(f'buffer_load_dwordx4 {dst}, v{voff}, {sr(srd)}, {s} offen{fl}')
    issue(tag)
def ring(i): return RING+4*i
def vdest(p):
    if p<NS: return ('ring',None)
    q=p-NS
    if q<NL: return ('lds',q*1024)
    q-=NL
    if q<NA: return ('a',4*q)
    return ('v',VR+4*(q-NA))
class Item:
    def __init__(s,kind,idx,dest=None,layer=0):
        s.kind=kind; s.idx=idx; s.dest=dest; s.tag=f'{kind}{layer}_{idx}'; s.reg=None; s.issued=False
stream=[]; sp=[0]; ringcnt=[0]; ringbusy=[0]; inflight=[0]; lastm0=[None]
def emit_load(it):
    k,i=it.kind,it.idx
    if it.dest is None or it.dest[0]=='ring':
        it.reg=ring(ringcnt[0]%R); ringcnt[0]+=1; ringbusy[0]+=1; dst=vr(it.reg)
    elif it.dest[0]=='v': it.reg=it.dest[1]; dst=vr(it.reg)
    elif it.dest[0]=='a': it.reg=it.dest[1]; dst=ar(it.reg)
    elif it.dest[0]=='dummy': dst=vr(it.dest[1])
    else: dst=None
    if k=='K': ld(dst,vOffKV,sK,i*1024,it.tag,nt=True)
    elif k=='V':
        if dst is None:
            im=(i*1024)%4096; m0=it.dest[1]-im
            if lastm0[0]!=m0:
                e(f's_add_u32 m0, s{sLdsW}, {m0}' if m0>=0 else f's_sub_u32 m0, s{sLdsW}, {-m0}'); e('s_nop 0'); lastm0[0]=m0
            ld(None,vOffKV,sV,i*1024,it.tag,nt=True,lds=True)
        else: ld(dst,vOffKV,sV,i*1024,it.tag,nt=True)
    elif k=='wq': ld(dst,vOffWq,sWq,i*32768,it.tag,stride4=False)
    elif k=='wo': ld(dst,vOffWo,sWo,i*1024,it.tag)
    elif k=='w1': ld(dst,vOffW1,sW1,i*3584,it.tag,stride4=False)
    elif k=='w2': ld(dst,vOffW2,sW2,i*1024,it.tag)
    elif k=='warm': i(dst); issue(it.tag)
    it.issued=True
    if k!='warm': inflight[0]+=1
def pump():
    while sp[0]<len(stream):
        it=stream[sp[0]]
        if it.kind in 'KV' and inflight[0]>=D: break
        if (it.dest is None or it.dest[0]=='ring') and ringbusy[0]>=R: break
        if len(vm)>=60: break
        emit_load(it); sp[0]+=1
items={}
def add(kind,idx,layer,dest=None):
    it=Item(kind,idx,dest,layer); stream.append(it)
    if kind!='warm': items[(kind,layer,idx)]=it
    return it
def need(kind,layer,idx):
    it=items[(kind,layer,idx)]
    assert it.issued,(kind,layer,idx)
    wait(it.tag); return it
def done(it,pumpit=True):
    inflight[0]-=1
    if it.dest is None or it.dest[0]=='ring': ringbusy[0]-=1
    if pumpit: pump()
def warm_items(layer):
    def mk(srd,voff,so,im):
        def f(dst): e(f'buffer_load_dwordx4 {dst}, v{voff}, {sr(srd)}, s{so} offen offset:{im}')
        return f
    out=[]
    for k in range(4): out.append(mk(sWo,vOffWo,sWarm,k*1024))
    for k in range(2): out.append(mk(sW2,vOffW2,sWarm+1,k*1024))
    for k in range(2): out.append(mk(sW1,vOffW1,sWarm+2+k,0))
    if layer==0:
        for k in range(4): out.append(mk(sWq,vOffWq,sWarm+4+k,0))
    return out
def build_stream():
    for i in range(32): add('wq',i,0,('v',VR+4*i))
    for layer in range(2):
        for p in range(256): add('K',p,layer)
        nv=256 if layer==0 else NS
        w=warm_items(layer) if WARM else []
        start=nv-40
        for p in range(nv):
            add('V',p,layer,vdest(p))
            if p>=start and w and (p-start)%2==0: add('warm',w.pop(0),layer,('dummy',Q))
        assert not w
        for i in range(32): add('wo',i,layer)
        for i in range(16): add('w1',i,layer)
        for i in range(14): add('w2',i,layer)
        if layer==0:
            for i in range(32): add('wq',i,1)

DPP='row_mask:0xf bank_mask:0xf'
def axpy_dpp(w,cl,ch,bc):
    for j in range(4):
        e(f'v_dot2c_f32_bf16_dpp v{ACC+2*j}, v{cl}, v{w+j} row_newbcast:{bc} {DPP}')
        e(f'v_dot2c_f32_bf16_dpp v{ACC+2*j+1}, v{ch}, v{w+j} row_newbcast:{bc} {DPP}')
def axpy(w,cl,ch):
    for j in range(4):
        e(f'v_dot2c_f32_bf16 v{ACC+2*j}, v{cl}, v{w+j}')
        e(f'v_dot2c_f32_bf16 v{ACC+2*j+1}, v{ch}, v{w+j}')
def zero_acc():
    for j in range(8): e(f'v_mov_b32 v{ACC+j}, 0')
def xrow(regs,op,tmp):
    for sw in ('v_permlane16_swap_b32','v_permlane32_swap_b32'):
        for r,t in zip(regs,tmp): e(f'v_mov_b32 v{t}, v{r}')
        e('s_nop 1')
        for r,t in zip(regs,tmp): e(f'{sw} v{t}, v{r}')
        e('s_nop 1')
        for r,t in zip(regs,tmp): e(f'{op} v{r}, v{r}, v{t}')
def rowred(r,op):
    for k in (8,4,2,1):
        e('s_nop 1'); e(f'{op}_dpp v{r}, v{r}, v{r} row_ror:{k} {DPP}')
def wavered(r,op,tmp):
    rowred(r,op); xrow([r],op,[tmp])
def barrier():
    e('s_waitcnt lgkmcnt(0)'); e('s_barrier')
def red_write(base):
    e('s_nop 2')
    e(f'ds_write_b128 v{vRedW}, {vr(ACC)} offset:{base}')
    e(f'ds_write_b128 v{vRedW}, {vr(ACC+4)} offset:{base+16}')

def layernorm_to_lds(X):
    t=vC
    e(f'v_add_f32 v{t}, v{X}, v{X+1}')
    for j in range(2,8): e(f'v_add_f32 v{t}, v{t}, v{X+j}')
    wavered(t,'v_add_f32',vD)
    e(f'v_mul_f32 v{t}, 0x3b000000, v{t}')
    for j in range(8): e(f'v_sub_f32 v{X+j}, v{X+j}, v{t}')
    e(f'v_mul_f32 v{t}, v{X}, v{X}')
    for j in range(1,8): e(f'v_fma_f32 v{t}, v{X+j}, v{X+j}, v{t}')
    wavered(t,'v_add_f32',vD)
    e(f'v_mov_b32 v{vD}, 0x3727c5ac')
    e(f'v_fmac_f32 v{vD}, 0x3b000000, v{t}')
    e(f'v_rsq_f32 v{t}, v{vD}')
    e('s_nop 0')
    for j in range(8): e(f'v_mul_f32 v{X+j}, v{X+j}, v{t}')
    for j in range(8): e(f'v_cvt_pk_bf16_f32 v{X+j}, v{X+j}, 0')
    e(f'v_lshlrev_b32 v{vA}, 5, v{vLane}')
    e(f's_mov_b64 exec, s[{sMaskW}:{sMaskW+1}]')
    e(f'ds_write_b128 v{vA}, {vr(X)} offset:{LNC}')
    e(f'ds_write_b128 v{vA}, {vr(X+4)} offset:{LNC+16}')
    e('s_mov_b64 exec, -1')
    e('s_waitcnt lgkmcnt(0)')

def qproj(layer):
    e(f'v_and_b32 v{vA}, 15, v{vLane}'); e(f'v_lshlrev_b32 v{vA}, 4, v{vA}')
    e(f'v_lshrrev_b32 v{vB}, 4, v{vLane}'); e(f'v_lshl_add_u32 v{vA}, v{vB}, 2, v{vA}')
    e(f's_lshl_b32 s{sT2}, s{sW}, 9'); e(f'v_add_u32 v{vA}, s{sT2}, v{vA}')
    e(f'ds_read_b32 v{vC}, v{vA} offset:{LNC}'); e(f'ds_read_b32 v{vD}, v{vA} offset:{LNC+256}')
    zero_acc()
    e('s_waitcnt lgkmcnt(0)')
    e(f'v_lshlrev_b32 v{vE}, 16, v{vC}'); e(f'v_lshlrev_b32 v{vF}, 16, v{vD}'); e('s_nop 1')
    for i in range(32):
        it=need('wq',layer,i)
        axpy_dpp(it.reg, vC if i<16 else vD, vE if i<16 else vF, i%16)
        done(it)
    rb=nextred(); red_write(rb); barrier()
    e(f'v_lshrrev_b32 v{vA}, 4, v{vLane}'); e(f'v_lshlrev_b32 v{vA}, 11, v{vA}')
    e(f'v_and_b32 v{vB}, 15, v{vLane}'); e(f'v_lshl_add_u32 v{vA}, v{vB}, 5, v{vA}')
    for half in range(2):
        for g in range(4): e(f'ds_read_b128 {vr(T+4*g)}, v{vA} offset:{rb+g*512+half*16}')
        e('s_waitcnt lgkmcnt(0)')
        for j in range(4):
            e(f'v_add_f32 v{T+j}, v{T+j}, v{T+4+j}'); e(f'v_add_f32 v{T+8+j}, v{T+8+j}, v{T+12+j}')
        for j in range(4): e(f'v_add_f32 v{ACC+4*half+j}, v{T+j}, v{T+8+j}')
    xrow([ACC+j for j in range(8)],'v_add_f32',[T+j for j in range(8)])
    for j in range(4): e(f'v_cvt_pk_bf16_f32 v{Q+j}, v{ACC+2*j}, v{ACC+2*j+1}')

def kgroup(get,fin):
    for i in range(16):
        w=get(i)
        e(f'v_dot2_f32_bf16 v{T+i}, v{w}, v{Q}, 0')
        for j in range(1,4): e(f'v_dot2_f32_bf16 v{T+i}, v{w+j}, v{Q+j}, v{T+i}')
        fin(i)
    e('s_nop 2')
    for i in range(8): e(f'v_add_f32_dpp v{T+i}, v{T+i}, v{T+i} row_ror:8 row_mask:0xf bank_mask:0x3')
    for i in range(8): e(f'v_add_f32_dpp v{T+i}, v{T+i+8}, v{T+i+8} row_ror:8 row_mask:0xf bank_mask:0xc')
    for i in range(4): e(f'v_add_f32_dpp v{T+i}, v{T+i}, v{T+i} row_half_mirror row_mask:0xf bank_mask:0x5')
    for i in range(4): e(f'v_add_f32_dpp v{T+i}, v{T+i+4}, v{T+i+4} row_half_mirror row_mask:0xf bank_mask:0xa')
    e('s_nop 1')
    for i in range(4): e(f'v_add_f32_dpp v{T+i}, v{T+i}, v{T+i} quad_perm:[2,3,0,1] {DPP}')
    for i in range(2): e(f'v_cndmask_b32 v{T+i}, v{T+i}, v{T+i+2}, s[{sM2}:{sM2+1}]')
    e('s_nop 1')
    for i in range(2): e(f'v_add_f32_dpp v{T+i}, v{T+i}, v{T+i} quad_perm:[1,0,3,2] {DPP}')
    for j in range(15): e(f'v_mov_b32 v{S+j}, v{S+j+1}')
    e(f'v_cndmask_b32 v{S+15}, v{T}, v{T+1}, s[{sM1}:{sM1+1}]')

def kphase(layer):
    pump()
    its=[items[('K',layer,p)] for p in range(256)]
    assert all(its[p].issued for p in range(D)) and not its[D].issued and inflight[0]==D
    base=(its[0].reg-RING)//4
    assert vm[-D:]==[its[p].tag for p in range(D)]
    e(f's_mov_b32 s{sGrp}, 0'); e(f's_mov_b32 s{sCnt}, 15')
    lp=newlab('KLOOP'); lab(lp)
    def get(i):
        e(f's_waitcnt vmcnt({D-1})'); return ring((base+i)%R)
    def fin(i):
        n=i+D
        if n%4==0 or i==0: e(f's_add_u32 s{sT}, s{sGrp}, {(n-n%4)*1024}')
        im=(n%4)*1024
        e(f'buffer_load_dwordx4 {vr(ring((base+n)%R))}, v{vOffKV}, {sr(sK)}, s{sT} offen'+(f' offset:{im}' if im else '')+' nt')
    kgroup(get,fin)
    e(f's_add_u32 s{sGrp}, s{sGrp}, 16384'); e(f's_sub_u32 s{sCnt}, s{sCnt}, 1')
    e(f's_cmp_lg_u32 s{sCnt}, 0'); e(f's_cbranch_scc1 {lp}')
    cur_soff[0]=None
    del vm[:]
    for p in range(D,240+D):
        it=stream[sp[0]]; assert it is its[p]; it.issued=True; it.reg=ring((base+p)%R); sp[0]+=1; ringcnt[0]+=1
    for p in range(240,240+D): issue(its[p].tag)
    def get2(i): return need('K',layer,240+i).reg
    def fin2(i): done(its[240+i])
    kgroup(get2,fin2)

def softmax():
    c='0x3e0293ee'
    e(f's_mov_b32 s{sC1}, {c}')
    m=vC
    e(f'v_max3_f32 v{m}, v{S}, v{S+1}, v{S+2}')
    for j in range(3,15,2): e(f'v_max3_f32 v{m}, v{m}, v{S+j}, v{S+j+1}')
    e(f'v_max_f32 v{m}, v{m}, v{S+15}')
    wavered(m,'v_max_f32',vD)
    e(f'v_mul_f32 v{m}, s{sC1}, v{m}')
    for j in range(16): e(f'v_fma_f32 v{S+j}, v{S+j}, s{sC1}, -v{m}')
    for j in range(16): e(f'v_exp_f32 v{S+j}, v{S+j}')
    e('s_nop 0')
    for j in range(16): e(f'v_cvt_pk_bf16_f32 v{S+j}, v{S+j}, 0')
    l=vD
    e(f'v_mov_b32 v{l}, 0')
    for j in range(16):
        e(f'v_lshlrev_b32 v{vE}, 16, v{S+j}'); e(f'v_add_f32 v{l}, v{l}, v{vE}')
    wavered(l,'v_add_f32',vE)
    zero_acc()

def vphase(layer):
    if layer==0: order=list(range(256))
    else:
        order=[]; a=0; b=NS
        while a<NS or b<256:
            if a<NS and (b>=256 or a*NRET<=(b-NS)*NS): order.append(a); a+=1
            else: order.append(b); b+=1
    chg={}
    ldsq=[p for p in order if vdest(p)[0]=='lds']; ldsi=[0]; ldsout=[]
    def ldsread():
        p=ldsq[ldsi[0]]; buf=T+4*(ldsi[0]%3); ldsi[0]+=1
        if layer==0: assert items[('V',0,p)].issued; wait(items[('V',0,p)].tag)
        e(f'ds_read_b128 {vr(buf)}, v{vLdsR} offset:{vdest(p)[1]}'); ldsout.append((p,buf))
    for n,p in enumerate(order):
        k,r=vdest(p); g=p//16
        ch=cH if (layer==0 and g%2==0) or (layer==1 and p<NS) else cH2
        if chg.get(ch)!=g:
            e(f'v_lshlrev_b32 v{ch}, 16, v{S+g}'); e('s_nop 1'); chg[ch]=g
        upcoming=[q for q in order[n:n+(3 if layer==0 else 6)] if vdest(q)[0]=='lds']
        while ldsi[0]<len(ldsq) and ldsq[ldsi[0]] in upcoming and len(ldsout)<3: ldsread()
        it=items.get(('V',layer,p)) if (layer==0 or p<NS) else None
        assert it is None or it.issued
        if k=='lds':
            assert ldsout[0][0]==p
            e(f's_waitcnt lgkmcnt({len(ldsout)-1})'); w=ldsout.pop(0)[1]
        elif k=='a':
            if it: wait(it.tag)
            for j in range(4): e(f'v_accvgpr_read_b32 v{vStg+j}, a{r+j}')
            w=vStg
        elif k=='v':
            if it: wait(it.tag)
            w=r
        else:
            wait(it.tag); w=it.reg
        axpy_dpp(w,S+g,ch,p%16)
        if it: done(it)

def oreduce_outproj(layer):
    rb=nextred(); red_write(rb)
    e(f's_lshl_b32 s{sT2}, s{sW}, 3'); e(f'v_mov_b32 v{vA}, s{sT2}')
    e('s_mov_b64 exec, 1'); e(f'ds_write_b64 v{vA}, v[{vC}:{vD}] offset:{STAT}'); e('s_mov_b64 exec, -1')
    barrier()
    e(f'v_lshrrev_b32 v{vB}, 4, v{vLane}')
    e(f'v_lshlrev_b32 v{vA}, 3, v{vB}'); e(f'ds_read_b64 v[{vC}:{vD}], v{vA} offset:{STAT}')
    e(f'v_lshlrev_b32 v{vA}, 11, v{vB}')
    e(f'v_and_b32 v{vB}, 15, v{vLane}'); e(f'v_lshl_add_u32 v{vA}, v{vB}, 2, v{vA}')
    e(f's_lshl_b32 s{sT2}, s{sW}, 7'); e(f'v_add_u32 v{vA}, s{sT2}, v{vA}')
    for a in range(2):
        for g in range(4): e(f'ds_read_b32 v{T+4*a+g}, v{vA} offset:{rb+g*512+a*64}')
    e('s_waitcnt lgkmcnt(0)')
    e(f'v_mov_b32 v{vE}, v{vC}')
    xrow([vE],'v_max_f32',[vF])
    e(f'v_sub_f32 v{vC}, v{vC}, v{vE}'); e(f'v_exp_f32 v{vC}, v{vC}'); e('s_nop 0')
    e(f'v_mul_f32 v{vD}, v{vD}, v{vC}')
    for a in range(2):
        b=T+4*a
        e(f'v_add_f32 v{b}, v{b}, v{b+1}'); e(f'v_add_f32 v{b+2}, v{b+2}, v{b+3}'); e(f'v_add_f32 v{b}, v{b}, v{b+2}')
        e(f'v_mul_f32 v{b}, v{b}, v{vC}')
    xrow([vD,T,T+4],'v_add_f32',[vF,T+8,T+9])
    e(f'v_rcp_f32 v{vD}, v{vD}'); e('s_nop 0')
    e(f'v_mul_f32 v{T}, v{T}, v{vD}'); e(f'v_mul_f32 v{T+4}, v{T+4}, v{vD}')
    e(f'v_cvt_pk_bf16_f32 v{vC}, v{T}, 0'); e(f'v_cvt_pk_bf16_f32 v{vD}, v{T+4}, 0')
    e(f'v_lshlrev_b32 v{vE}, 16, v{vC}'); e(f'v_lshlrev_b32 v{vF}, 16, v{vD}')
    zero_acc();
    for i in range(32):
        it=need('wo',layer,i)
        axpy_dpp(it.reg, vC if i<16 else vD, vE if i<16 else vF, i%16)
        done(it)

def spin_guard(lp):
    e(f's_sub_u32 s{sTo}, s{sTo}, 1'); e(f's_cmp_eq_u32 s{sTo}, 0'); e(f's_cbranch_scc0 {lp}')

def publish(stage,first=False):
    rb=nextred(); red_write(rb); barrier()
    sk=newlab('NOPUB')
    e(f's_cmp_ge_u32 s{sW}, 2'); e(f's_cbranch_scc1 {sk}')
    saved=list(vm)
    e(f's_lshl_b32 s{sT2}, s{sW}, 10'); e(f'v_lshl_add_u32 v{vA}, v{vLane}, 4, s{sT2}')
    for w in range(4): e(f'ds_read_b128 {vr(T+4*w)}, v{vA} offset:{rb+w*2048}')
    e(f'v_lshrrev_b32 v{vB}, 6, v{vA}'); e(f'v_lshlrev_b32 v{vB}, 11, v{vB}')
    e(f'v_and_b32 v{vA}, 48, v{vA}'); e(f'v_add_u32 v{vB}, v{vB}, v{vA}')
    e(f's_lshl_b32 s{sT2}, s{sB}, 16'); e(f's_lshl_b32 s{sT}, s{sH}, 6'); e(f's_add_u32 s{sT2}, s{sT2}, s{sT}')
    e(f's_add_u32 s{sT2}, s{sT2}, {PART+stage*524288}'); cur_soff[0]=None
    if first:
        lp=newlab('START'); ok=newlab('STARTOK')
        e(f's_lshl_b32 s{sT}, s{sB}, 5'); e(f'v_mov_b32 v{vE}, s{sT}'); e(f's_mov_b32 s{sTo}, 0x20000'); e(f's_mov_b32 s{sC1}, 128')
        lab(lp)
        e(f'buffer_load_dword v{vF}, v{vE}, {sr(sDbg)}, 0 offen sc0 sc1'); e('s_waitcnt vmcnt(0)')
        e(f'v_cmp_le_u32 vcc, s{sC1}, v{vF}'); e(f's_cbranch_vccnz {ok}')
        spin_guard(lp); lab(ok)
    e('s_waitcnt lgkmcnt(0)')
    for j in range(4):
        e(f'v_add_f32 v{T+j}, v{T+j}, v{T+4+j}'); e(f'v_add_f32 v{T+8+j}, v{T+8+j}, v{T+12+j}')
    for j in range(4): e(f'v_add_f32 v{T+j}, v{T+j}, v{T+8+j}')
    e(f'buffer_store_dwordx4 {vr(T)}, v{vB}, {sr(sWs)}, s{sT2} offen sc0 sc1')
    lab(sk)
    vm[:]=saved

def poll(loads, regs, lp, ok):
    e(f's_mov_b32 s{sTo}, 0x20000')
    lab(lp)
    loads()
    e('s_waitcnt vmcnt(0)')
    m=vF
    e(f'v_max3_u32 v{m}, v{regs[0]}, v{regs[1]}, v{regs[2]}')
    e(f'v_max3_u32 v{m}, v{m}, v{regs[3]}, v{regs[4]}'); e(f'v_max3_u32 v{m}, v{m}, v{regs[5]}, v{regs[6]}')
    e(f'v_max_u32 v{m}, v{m}, v{regs[7]}')
    e(f'v_cmp_eq_u32 vcc, {SENT}, v{m}')
    e(f's_cbranch_vccz {ok}')
    spin_guard(lp); lab(ok)
    del vm[:]

def hopA(stage,final):
    sk=newlab('NOHOPA')
    e(f's_cmp_lg_u32 s{sW}, 0'); e(f's_cbranch_scc1 {sk}')
    saved=list(vm)
    e(f's_lshl_b32 s{sT2}, s{sB}, 16'); e(f's_lshl_b32 s{sT}, s{sH}, 11'); e(f's_add_u32 s{sT2}, s{sT2}, s{sT}')
    e(f's_add_u32 s{sT2}, s{sT2}, {PART+stage*524288}'); cur_soff[0]=None
    e(f'v_lshlrev_b32 v{vA}, 4, v{vLane}')
    def loads():
        e(f'buffer_load_dwordx4 {vr(T)}, v{vA}, {sr(sWs)}, s{sT2} offen sc0 sc1')
        e(f'buffer_load_dwordx4 {vr(T+4)}, v{vA}, {sr(sWs)}, s{sT2} offen offset:1024 sc0 sc1')
    poll(loads,[T+j for j in range(8)],newlab('HA'),newlab('HAOK'))
    for j in range(4): e(f'v_add_f32 v{T+j}, v{T+j}, v{T+4+j}')
    for k in (4,8):
        e('s_nop 1')
        for j in range(4): e(f'v_add_f32_dpp v{T+j}, v{T+j}, v{T+j} row_ror:{k} {DPP}')
    xrow([T+j for j in range(4)],'v_add_f32',[T+4+j for j in range(4)])
    e(f'v_cvt_pk_bf16_f32 v{T+4}, v{T}, v{T+1}'); e(f'v_cvt_pk_bf16_f32 v{T+5}, v{T+2}, v{T+3}')
    e(f'v_lshlrev_b32 v{T}, 16, v{T+4}'); e(f'v_and_b32 v{T+1}, 0xffff0000, v{T+4}')
    e(f'v_lshlrev_b32 v{T+2}, 16, v{T+5}'); e(f'v_and_b32 v{T+3}, 0xffff0000, v{T+5}')
    for j in range(4): e(f'v_add_f32 v{T+j}, v{T+j}, v{XR+j}')
    e(f'v_cvt_pk_bf16_f32 v{T+4}, v{T}, v{T+1}'); e(f'v_cvt_pk_bf16_f32 v{T+5}, v{T+2}, v{T+3}')
    if final:
        e(f'v_lshlrev_b32 v{vA}, 3, v{vLane}')
        e('s_mov_b64 exec, 15')
        e(f'buffer_store_dwordx2 v[{T+4}:{T+5}], v{vA}, {sr(sOut)}, 0 offen')
        e('s_mov_b64 exec, -1')
    else:
        e(f'v_lshlrev_b32 v{XR}, 16, v{T+4}'); e(f'v_and_b32 v{XR+1}, 0xffff0000, v{T+4}')
        e(f'v_lshlrev_b32 v{XR+2}, 16, v{T+5}'); e(f'v_and_b32 v{XR+3}, 0xffff0000, v{T+5}')
        e(f's_lshl_b32 s{sT2}, s{sB}, 11'); e(f's_lshl_b32 s{sT}, s{sH}, 6'); e(f's_add_u32 s{sT2}, s{sT2}, s{sT}')
        e(f's_add_u32 s{sT2}, s{sT2}, {XS+stage*16384}')
        e('s_mov_b64 exec, 15')
        e(f'buffer_store_dwordx4 {vr(XR)}, v{vA}, {sr(sWs)}, s{sT2} offen sc0 sc1')
        e('s_mov_b64 exec, -1')
    lab(sk)
    vm[:]=saved

def hopB(stage):
    e(f's_lshl_b32 s{sT2}, s{sB}, 11'); e(f's_add_u32 s{sT2}, s{sT2}, {XS+stage*16384}'); cur_soff[0]=None
    e(f'v_lshlrev_b32 v{vA}, 5, v{vLane}')
    def loads():
        e(f'buffer_load_dwordx4 {vr(T)}, v{vA}, {sr(sWs)}, s{sT2} offen sc0 sc1')
        e(f'buffer_load_dwordx4 {vr(T+4)}, v{vA}, {sr(sWs)}, s{sT2} offen offset:16 sc0 sc1')
    poll(loads,[T+j for j in range(8)],newlab('HB'),newlab('HBOK'))

def ffn(layer):
    e(f'v_lshrrev_b32 v{vA}, 3, v{vLane}'); e(f'v_lshlrev_b32 v{vA}, 6, v{vA}')
    e(f's_lshl_b32 s{sT2}, s{sW}, 9'); e(f'v_add_u32 v{vA}, s{sT2}, v{vA}')
    for k in range(4): e(f'ds_read_b128 {vr(S+4*k)}, v{vA} offset:{LNC+16*k}')
    zero_acc()
    e('s_waitcnt lgkmcnt(0)')
    for i in range(16):
        e(f'v_lshlrev_b32 v{cH if i%2==0 else cH2}, 16, v{S+i}')
        it=need('w1',layer,i)
        axpy(it.reg,S+i,cH if i%2==0 else cH2)
        done(it)
    rb=nextred(); red_write2(rb); barrier()
    e(f'v_lshrrev_b32 v{vA}, 4, v{vLane}'); e(f'v_lshlrev_b32 v{vA}, 11, v{vA}')
    e(f'v_and_b32 v{vB}, 15, v{vLane}'); e(f'v_lshl_add_u32 v{vA}, v{vB}, 2, v{vA}')
    e(f's_mul_i32 s{sT2}, s{sW}, 56'); e(f'v_add_u32 v{vA}, s{sT2}, v{vA}')
    for p in range(8): e(f'ds_read_b32 v{T+p}, v{vA} offset:{rb+p*256}')
    e('s_waitcnt lgkmcnt(0)')
    for j in range(4): e(f'v_add_f32 v{T+j}, v{T+j}, v{T+4+j}')
    e(f'v_add_f32 v{T}, v{T}, v{T+1}'); e(f'v_add_f32 v{T+2}, v{T+2}, v{T+3}'); e(f'v_add_f32 v{T}, v{T}, v{T+2}')
    xrow([T],'v_add_f32',[T+1])
    e(f'v_cvt_pk_bf16_f32 v{T}, v{T}, 0'); e(f'v_lshlrev_b32 v{T}, 16, v{T}')
    e(f'v_mul_f32 v{T+1}, 0xbfb8aa3b, v{T}'); e(f'v_exp_f32 v{T+1}, v{T+1}'); e('s_nop 0')
    e(f'v_add_f32 v{T+1}, 1.0, v{T+1}'); e(f'v_rcp_f32 v{T+1}, v{T+1}'); e('s_nop 0')
    e(f'v_mul_f32 v{T}, v{T}, v{T+1}')
    e(f'v_cvt_pk_bf16_f32 v{vC}, v{T}, 0'); e(f'v_lshlrev_b32 v{vE}, 16, v{vC}')
    zero_acc()
    for i in range(14):
        it=need('w2',layer,i)
        axpy_dpp(it.reg,vC,vE,i)
        done(it)
def red_write2(base):
    red_write(base)

L.append(open('interleave_layers__mha_block_cached__dense_activation_silu__decode.s.ref').read().split('; Override launch')[0].rstrip())
L.append('; One persistent workgroup per (batch, head): both layers fused; half of V stays on chip between the two attention passes.')
L.append(f'; @launch grid=(256,1,1) block=(256,1,1) lds={LDS_TOTAL}')
L.append('.amdgcn_target "amdgcn-amd-amdhsa--gfx950"'); L.append('.text'); L.append(f'.globl {NAME}'); L.append('.p2align 8')
L.append(f'.type {NAME},@function'); lab(NAME)
e('s_cmp_ge_u32 s2, 256'); e('s_cbranch_scc1 L_END')
e('s_load_dwordx16 s[48:63], s[0:1], 0'); e('s_load_dwordx4 s[64:67], s[0:1], 64'); e('s_load_dwordx2 s[68:69], s[0:1], 80')
e(f's_and_b32 s{sT}, s2, 7'); e(f's_lshl_b32 s{sT}, s{sT}, 2'); e(f's_lshr_b32 s{sT2}, s2, 3')
e(f's_and_b32 s{sH}, s{sT2}, 3'); e(f's_add_u32 s{sH}, s{sH}, s{sT}'); e(f's_lshr_b32 s{sB}, s{sT2}, 2')
e(f'v_lshrrev_b32 v1, 6, v0'); e(f'v_and_b32 v{vLane}, 63, v0'); e(f'v_readfirstlane_b32 s{sW}, v1')
e('s_waitcnt lgkmcnt(0)')
def srd(d,plo,offs,num):
    if offs is None: e(f's_mov_b32 s{d}, s{plo}'); e(f's_and_b32 s{d+1}, s{plo+1}, 0xffff')
    else:
        e(f's_add_u32 s{d}, s{plo}, s{offs}'); e(f's_addc_u32 s{d+1}, s{plo+1}, 0'); e(f's_and_b32 s{d+1}, s{d+1}, 0xffff')
    e(f's_mov_b32 s{d+2}, {num}'); e(f's_mov_b32 s{d+3}, 0x00020000')
e(f's_lshl_b32 s{sT}, s{sB}, 5'); e(f's_add_u32 s{sT}, s{sT}, s{sH}'); e(f's_lshl_b32 s{sT}, s{sT}, 20')
srd(sK,50,sT,0x100000); srd(sV,52,sT,0x100000)
e(f's_lshl_b32 s{sT}, s{sH}, 8'); e(f's_sub_u32 s{sT2}, {512*8192}, s{sT}'); srd(sWq,54,sT,f's{sT2}')
e(f's_lshl_b32 s{sT}, s{sH}, 17'); srd(sWo,56,sT,131072)
e(f's_mul_i32 s{sT}, s{sH}, 112'); e(f's_sub_u32 s{sT2}, {512*3584}, s{sT}'); srd(sW1,60,sT,f's{sT2}')
e(f's_mul_i32 s{sT}, s{sH}, 57344'); srd(sW2,62,sT,57344)
srd(sWs,68,None,32*1024*1024)
e(f's_lshl_b32 s{sT}, s{sB}, 10'); srd(sX,48,sT,1024)
e(f's_lshl_b32 s{sT2}, s{sH}, 5'); e(f's_add_u32 s{sT}, s{sT}, s{sT2}'); srd(sOut,64,sT,32)
srd(sDbg,66,None,256)
stamp('start')
e(f's_lshl_b32 s{sT}, s{sW}, 4'); e(f's_mov_b64 s[{sMaskW}:{sMaskW+1}], 0xffff'); e(f's_lshl_b64 s[{sMaskW}:{sMaskW+1}], s[{sMaskW}:{sMaskW+1}], s{sT}')
e(f's_mov_b32 s{sM2}, 0xcccccccc'); e(f's_mov_b32 s{sM2+1}, 0xcccccccc'); e(f's_mov_b32 s{sM1}, 0xaaaaaaaa'); e(f's_mov_b32 s{sM1+1}, 0xaaaaaaaa')
e(f's_mul_i32 s{sLdsW}, s{sW}, {NL*1024}'); e(f's_add_u32 s{sLdsW}, s{sLdsW}, {LDS_RET}'); e(f'v_lshl_add_u32 v{vLdsR}, v{vLane}, 4, s{sLdsW}')
e(f's_lshl_b32 s{sT}, s{sW}, 18'); e(f'v_lshl_add_u32 v{vOffKV}, v{vLane}, 4, s{sT}')
e(f's_lshl_b32 s{sT}, s{sW}, 15'); e(f'v_lshl_add_u32 v{vOffWo}, v{vLane}, 4, s{sT}')
e(f's_mul_i32 s{sT}, s{sW}, 14336'); e(f'v_lshl_add_u32 v{vOffW2}, v{vLane}, 4, s{sT}')
e(f's_lshl_b32 s{sT}, s{sW}, 11'); e(f'v_lshl_add_u32 v{vRedW}, v{vLane}, 5, s{sT}')
e(f'v_lshrrev_b32 v{vA}, 4, v{vLane}'); e(f'v_lshlrev_b32 v{vA}, 13, v{vA}'); e(f'v_and_b32 v{vB}, 15, v{vLane}')
e(f'v_lshl_add_u32 v{vA}, v{vB}, 4, v{vA}'); e(f's_lshl_b32 s{sT}, s{sW}, 20'); e(f'v_add_u32 v{vOffWq}, s{sT}, v{vA}')
e(f'v_lshrrev_b32 v{vA}, 3, v{vLane}'); e(f'v_lshlrev_b32 v{vA}, 4, v{vA}'); e(f's_lshl_b32 s{sT}, s{sW}, 7'); e(f'v_add_u32 v{vA}, s{sT}, v{vA}')
e(f's_movk_i32 s{sT}, 3584'); e(f'v_mul_lo_u32 v{vA}, v{vA}, s{sT}'); e(f'v_and_b32 v{vB}, 7, v{vLane}'); e(f'v_lshl_add_u32 v{vOffW1}, v{vB}, 4, v{vA}')
e(f'v_lshlrev_b32 v{vA}, 4, v{vLane}')
e(f'buffer_load_dwordx4 {vr(S)}, v{vA}, {sr(sX)}, 0 offen'); issue('x')
e(f'v_lshlrev_b32 v{vB}, 3, v{vLane}'); e(f's_lshl_b32 s{sT}, s{sH}, 5')
e(f'buffer_load_dwordx2 v[{S+4}:{S+5}], v{vB}, {sr(sX)}, s{sT} offen'); issue('xr')
for j in range(4): e(f'v_mov_b32 v{T+j}, {SENT}')
e(f's_lshl_b32 s{sT}, s{sW}, 19'); e(f's_lshl_b32 s{sT2}, s{sB}, 16'); e(f's_add_u32 s{sT}, s{sT}, s{sT2}')
e(f's_lshl_b32 s{sT2}, s{sH}, 11'); e(f's_add_u32 s{sT}, s{sT}, s{sT2}')
e(f'buffer_store_dwordx4 {vr(T)}, v{vA}, {sr(sWs)}, s{sT} offen sc0 sc1'); issue('init')
e(f'buffer_store_dwordx4 {vr(T)}, v{vA}, {sr(sWs)}, s{sT} offen offset:1024 sc0 sc1'); issue('init')
e(f's_lshl_b32 s{sT}, s{sW}, 14'); e(f's_lshl_b32 s{sT2}, s{sB}, 11'); e(f's_add_u32 s{sT}, s{sT}, s{sT2}')
e(f's_lshl_b32 s{sT2}, s{sH}, 6'); e(f's_add_u32 s{sT}, s{sT}, s{sT2}'); e(f's_add_u32 s{sT}, s{sT}, {XS}')
e('s_mov_b64 exec, 15')
e(f'buffer_store_dwordx4 {vr(T)}, v{vA}, {sr(sWs)}, s{sT} offen sc0 sc1'); issue('init')
e('s_mov_b64 exec, -1')
e(f's_lshl_b32 s{sWarm}, s{sB}, 12'); e(f's_mul_i32 s{sWarm+1}, s{sB}, 1792')
e(f's_mul_i32 s{sWarm+2}, s{sB}, {2*3584}'); e(f's_add_u32 s{sWarm+3}, s{sWarm+2}, 3584')
e(f's_lshl_b32 s{sWarm+4}, s{sB}, 17')
for k in range(1,4): e(f's_add_u32 s{sWarm+4+k}, s{sWarm+4}, {k*32768}')
cur_soff[0]=None
build_stream(); pump()
wait('xr')
for j in range(4):
    e(f'v_lshlrev_b32 v{T+2*j}, 16, v{S+j}'); e(f'v_and_b32 v{T+2*j+1}, 0xffff0000, v{S+j}')
e(f'v_lshlrev_b32 v{XR}, 16, v{S+4}'); e(f'v_and_b32 v{XR+1}, 0xffff0000, v{S+4}')
e(f'v_lshlrev_b32 v{XR+2}, 16, v{S+5}'); e(f'v_and_b32 v{XR+3}, 0xffff0000, v{S+5}')
layernorm_to_lds(T)
qproj(0)
stamp('q1 done')
for layer in range(2):
    kphase(layer); stamp(f'K{layer} done')
    if layer==0:
        e(f's_lshl_b32 s{sT2}, s{sB}, 5'); e(f'v_mov_b32 v{vA}, s{sT2}'); e(f'v_mov_b32 v{vB}, 1')
        e('s_mov_b64 exec, 1'); e(f'buffer_atomic_add v{vB}, v{vA}, {sr(sDbg)}, 0 offen sc1'); e('s_mov_b64 exec, -1')
    softmax()
    vphase(layer); stamp(f'V{layer} done')
    oreduce_outproj(layer); stamp(f'outproj{layer}')
    publish(2*layer, first=(layer==0))
    hopA(2*layer,False); hopB(2*layer); stamp(f'hop1_{layer}')
    layernorm_to_lds(T)
    ffn(layer)
    publish(2*layer+1); stamp(f'ffn{layer}')
    if layer==0:
        hopA(1,False); hopB(1); stamp('hop2_0')
        layernorm_to_lds(T)
        qproj(1); stamp('q2 done')
    else:
        hopA(3,True); stamp('final')
e('s_waitcnt vmcnt(0)')
if PROF:
    sk=newlab('NOPROF'); e(f's_cmp_lg_u32 s{sW}, 0'); e(f's_cbranch_scc1 {sk}')
    e(f's_lshl_b32 s{sT}, s2, 6'); e(f's_add_u32 s{sT}, s{sT}, {PROFOFF}'); e(f'v_mov_b32 v{vA}, 0')
    for i in range(16):
        e(f'v_mov_b32 v{T}, s{sStamp+i}'); e(f'buffer_store_dword v{T}, v{vA}, {sr(sWs)}, s{sT} offen offset:{4*i}'); e('s_waitcnt vmcnt(0)')
    lab(sk)
lab('L_END'); e('s_endpgm')
L.append(f'''.section .rodata,"a"
.p2align 6
.amdhsa_kernel {NAME}
  .amdhsa_next_free_vgpr 512
  .amdhsa_next_free_sgpr 102
  .amdhsa_accum_offset 256
  .amdhsa_group_segment_fixed_size 0
  .amdhsa_kernarg_size 88
  .amdhsa_user_sgpr_count 2
  .amdhsa_user_sgpr_kernarg_segment_ptr 1
  .amdhsa_system_sgpr_workgroup_id_x 1
.end_amdhsa_kernel''')
open(OUT,'w').write('\n'.join(L)+'\n')
```
